```python
import torch

def _softmax(x, axis=-1):
    return torch.softmax(x, dim=axis)
def _gelu(x):
    return torch.nn.functional.gelu(x, approximate="tanh")
def _silu(x):
    return torch.nn.functional.silu(x)
def _sigmoid(x):
    return torch.sigmoid(x)
def _layernorm(x, axis=-1, eps=1e-5):
    m = x.mean(dim=axis, keepdim=True)
    v = x.var(dim=axis, keepdim=True, unbiased=False)
    return (x - m) / torch.sqrt(v + eps)
def _scatter_add(tgt, idx, src, axis=0):
    return tgt.clone().index_add_(axis, idx, src)
def _segment_sum(src, seg, n):
    out = torch.zeros((n,) + src.shape[1:], dtype=src.dtype)
    return out.index_add_(0, seg, src)
def _pad(x, pw):
    flat = tuple(v for pair in reversed(pw) for v in pair)
    return torch.nn.functional.pad(x, flat)

kernel_name = 'concat_heads__mha_block_cached__gqa_block_cached__near_ridge'

def setup_inputs():

    _w = (lambda a: (lambda t: t.to(torch.bfloat16) if t.is_floating_point() else t)(torch.as_tensor(a)))
    def _A_setup():
        B, Sq, D = 8, 96, 512
        H, Sk, Dh = 32, 1024, 128
        return {
            "x": _w((lambda *s: torch.randn(*s, dtype=torch.bfloat16) * 0.8)(B, Sq, D)),
            "k_cache": _w((lambda *s: torch.randn(*s, dtype=torch.bfloat16) * 0.8)(B, H, Sk, Dh)),
            "v_cache": _w((lambda *s: torch.randn(*s, dtype=torch.bfloat16) * 0.05)(B, H, Sk, Dh)),
            "wq": _w((lambda *s: torch.randn(*s, dtype=torch.bfloat16) * 0.8)(D, H * Dh) * (D ** -0.5)),
            "wo": _w((lambda *s: torch.randn(*s, dtype=torch.bfloat16) * 0.05)(H * Dh, D) * ((H * Dh) ** -0.5)),
        }
    _A_in = _A_setup()

    def _B_setup():
        B, Sq, D = 8, 96, 512
        Hq, Hkv, Sk, Dh = 32, 32, 1024, 128
        assert Hq % Hkv == 0, (Hq, Hkv)
        return {
            "x": _w((lambda *s: torch.randn(*s, dtype=torch.bfloat16) * 0.8)(B, Sq, D)),
            "k_cache": _w((lambda *s: torch.randn(*s, dtype=torch.bfloat16) * 0.8)(B, Hkv, Sk, Dh)),
            "v_cache": _w((lambda *s: torch.randn(*s, dtype=torch.bfloat16) * 0.05)(B, Hkv, Sk, Dh)),
            "wq": _w((lambda *s: torch.randn(*s, dtype=torch.bfloat16) * 0.8)(D, Hq * Dh) * (D ** -0.5)),
            "wo": _w((lambda *s: torch.randn(*s, dtype=torch.bfloat16) * 0.05)(Hq * Dh, D) * ((Hq * Dh) ** -0.5)),
        }
    _B_in = _B_setup()

    return {
        "A_x": _A_in["x"],
        "A_k_cache": _A_in["k_cache"],
        "A_v_cache": _A_in["v_cache"],
        "A_wq": _A_in["wq"],
        "A_wo": _A_in["wo"],
        "B_x": _B_in["x"],
        "B_k_cache": _B_in["k_cache"],
        "B_v_cache": _B_in["v_cache"],
        "B_wq": _B_in["wq"],
        "B_wo": _B_in["wo"],
    }

def reference(A_x, A_k_cache, A_v_cache, A_wq, A_wo, B_x, B_k_cache, B_v_cache, B_wq, B_wo):
    def _A_ref(x, k_cache, v_cache, wq, wo):
        B, Sq, D = x.shape
        H, Dh = 32, 128
        q = (lambda x, *d: x.permute(*d))((x @ wq).reshape(B, Sq, H, Dh), 0, 2, 1, 3)
        scores = torch.einsum("bhqd,bhkd->bhqk", q, k_cache) * (Dh ** -0.5)
        p = _softmax(scores, axis=-1)
        o = torch.einsum("bhqk,bhkd->bhqd", p, v_cache)
        return (lambda x, *d: x.permute(*d))(o, 0, 2, 1, 3).reshape(B, Sq, H * Dh) @ wo

    def _B_ref(x, k_cache, v_cache, wq, wo):
        B, Sq, D = x.shape
        Hq, Dh = 32, 128
        Hkv = k_cache.shape[1]
        rep = Hq // Hkv
        q = (lambda x, *d: x.permute(*d))((x @ wq).reshape(B, Sq, Hq, Dh), 0, 2, 1, 3)
        k = (lambda x, n, axis: torch.repeat_interleave(x, n, dim=axis))(k_cache, rep, axis=1)
        v = (lambda x, n, axis: torch.repeat_interleave(x, n, dim=axis))(v_cache, rep, axis=1)
        scores = torch.einsum("bhqd,bhkd->bhqk", q, k) * (Dh ** -0.5)
        p = _softmax(scores, axis=-1)
        o = torch.einsum("bhqk,bhkd->bhqd", p, v)
        return (lambda x, *d: x.permute(*d))(o, 0, 2, 1, 3).reshape(B, Sq, Hq * Dh) @ wo

    a = _A_ref(A_x, A_k_cache, A_v_cache, A_wq, A_wo)
    b = _B_ref(B_x, B_k_cache, B_v_cache, B_wq, B_wo)
    return torch.concatenate([a, b], axis=-1)
```

```python
KN = "concat_heads__mha_block_cached__gqa_block_cached__near_ridge_kernel"

class Asm:
    def __init__(self):
        self.lines = []
        self.nlabel = 0
    def __call__(self, s):
        for l in s.split("\n"):
            l = l.strip()
            if l: self.lines.append("    " + l if not l.endswith(":") else l)
    def label(self, base="L"):
        self.nlabel += 1
        return f"{base}_{self.nlabel}"
    def text(self):
        return "\n".join(self.lines) + "\n"

HEADER_KARG = """; Kernarg layout (104 bytes, ptrs only, base s[0:1]):
"""

def kernel_wrap(name, body, vgpr=512, accum=256, sgpr=102):
    return f""".text
.globl {name}
.p2align 8
.type {name},@function
{name}:
{body}
.section .rodata,"a"
.p2align 6
.amdhsa_kernel {name}
  .amdhsa_next_free_vgpr {vgpr}
  .amdhsa_next_free_sgpr {sgpr}
  .amdhsa_accum_offset {accum}
  .amdhsa_group_segment_fixed_size 0
  .amdhsa_kernarg_size 104
  .amdhsa_user_sgpr_count 2
  .amdhsa_user_sgpr_kernarg_segment_ptr 1
  .amdhsa_system_sgpr_workgroup_id_x 1
.end_amdhsa_kernel
"""

def file_wrap(launch_lines, kernels):
    return HEADER_KARG + "\n".join(launch_lines) + '\n.amdgcn_target "amdgcn-amd-amdhsa--gfx950"\n' + "\n".join(kernels)
```

```python
import re

REG_RE = re.compile(r'^(-?)(abs\()?([vas])(?:(\d+)|\[(\d+):(\d+)\])\)?$')

def regs_of(op):
    op = op.strip()
    if op in ("vcc", "vcc_lo", "vcc_hi"): return [("x", "vcc")]
    if op in ("exec", "exec_lo", "exec_hi"): return [("x", "exec")]
    if op == "m0": return [("x", "m0")]
    m = REG_RE.match(op)
    if not m: return []
    k = m.group(3)
    if m.group(4) is not None: return [(k, int(m.group(4)))]
    return [(k, i) for i in range(int(m.group(5)), int(m.group(6)) + 1)]

TRANS = ("v_exp_f32", "v_log_f32", "v_rcp_f32", "v_rsq_f32", "v_sqrt_f32", "v_sin_f32", "v_cos_f32")

class Ins:
    __slots__ = ("text", "op", "kind", "defs", "uses", "states", "srcC", "passes", "wide_store_data")
    def __init__(self, text):
        self.text = text
        t = text.split(";")[0].strip()
        parts = t.split(None, 1)
        self.op = op = parts[0]
        rest = parts[1] if len(parts) > 1 else ""
        ops = [o.strip() for o in re.split(r',(?![^\[]*\])', rest)] if rest else []
        clean = []
        for o in ops:
            clean.append(o.split()[0] if o else o)
        ops = clean
        self.defs = []; self.uses = []; self.states = 1; self.srcC = []; self.passes = 0; self.wide_store_data = []
        R = lambda i: regs_of(ops[i]) if i < len(ops) else []
        if op == "s_nop":
            self.kind = "nop"; self.states = int(ops[0], 0) + 1
        elif op.startswith("v_mfma"):
            self.kind = "mfma"
            self.defs = R(0); self.uses = R(1) + R(2) + R(3); self.srcC = R(3)
            self.passes = 8 if "32x32x16" in op else (4 if "16x16x32" in op else 16)
        elif op.startswith("v_cmp"):
            self.kind = "valu"; self.defs = R(0); self.uses = R(1) + R(2) + [("x", "exec")]
            if op.startswith("v_cmpx"): self.defs += [("x", "exec")]
        elif op.startswith("v_readfirstlane") or op.startswith("v_readlane"):
            self.kind = "valu"; self.defs = R(0); self.uses = R(1) + R(2)
        elif op.startswith("v_permlane"):
            self.kind = "valu"; self.defs = R(0) + R(1); self.uses = R(0) + R(1)
        elif op.startswith("v_"):
            self.kind = "valu"
            self.defs = R(0)
            srcs = []
            start = 1
            if op.startswith(("v_add_co", "v_sub_co", "v_addc_co", "v_subb_co", "v_div_scale")):
                self.defs += R(1); start = 2
            for i in range(start, len(ops)): srcs += R(i)
            if op.startswith(("v_fmac", "v_mac", "v_pk_fmac", "v_dot2c")): srcs += R(0)
            if op.startswith("v_cndmask") and len(ops) == 3: srcs += [("x", "vcc")]
            self.uses = srcs
        elif op.startswith("ds_read") or op.startswith("ds_bpermute") or op.startswith("ds_swizzle"):
            self.kind = "ds"; self.defs = R(0); self.uses = [r for i in range(1, len(ops)) for r in R(i)]
        elif op.startswith("ds_"):
            self.kind = "ds"; self.uses = [r for i in range(0, len(ops)) for r in R(i)]
        elif op.startswith("buffer_load") or op.startswith("global_load"):
            self.kind = "vmem"
            if " lds" in t or "_lds_" in op:
                self.uses = [r for i in range(0, len(ops)) for r in R(i)] + [("x", "m0")]
                self.kind = "vmem_lds"
            else:
                self.defs = R(0); self.uses = [r for i in range(1, len(ops)) for r in R(i)]
        elif op.startswith("buffer_store") or op.startswith("global_store") or op.startswith("buffer_atomic") or op.startswith("global_atomic"):
            self.kind = "vmem"
            self.uses = [r for i in range(0, len(ops)) for r in R(i)]
            if "dwordx4" in op or "dwordx3" in op:
                self.wide_store_data = R(0) if op.startswith("buffer") else R(1)
            if "atomic" in op and (" sc0" in t):
                self.defs = R(0)
        elif op.startswith("buffer_"):
            self.kind = "vmem"
        elif op.startswith("s_"):
            self.kind = "salu"
            if op.startswith(("s_cmp", "s_cbranch", "s_branch", "s_waitcnt", "s_barrier", "s_endpgm", "s_sleep", "s_setprio", "s_bitcmp")):
                self.uses = [r for i in range(len(ops)) for r in R(i)]
            else:
                self.defs = R(0); self.uses = [r for i in range(1, len(ops)) for r in R(i)]
                if "saveexec" in op: self.defs += [("x", "exec")]; self.uses += [("x", "exec")]
        else:
            raise ValueError("unknown op " + text)

def need(p, c):
    n = 0
    pd = set(p.defs); cu = set(c.uses); cd = set(c.defs)
    vec = lambda S: {r for r in S if r[0] in "va"}
    sg = lambda S: {r for r in S if r[0] == "s" or r == ("x", "vcc")}
    if p.kind == "mfma":
        P = p.passes
        D = pd
        if c.kind == "mfma":
            cC = set(c.srcC)
            ab = cu - cC if False else set()
            cAB = set(c_ab(c))
            if D & cAB: n = max(n, {2: 5, 4: 8, 8: 12, 16: 20}[P])
            if D & cC:
                if cC == D and c.passes == P: pass
                else: n = max(n, {2: 4, 4: 6, 8: 10, 16: 18}[P])
            elif D & cd:
                n = max(n, {2: 5, 4: 8, 8: 12, 16: 20}[P])
        else:
            if D & (cu | cd): n = max(n, {2: 5, 4: 8, 8: 12, 16: 20}[P])
        if c.kind == "valu" and set(p.srcC) & cd:
            n = max(n, {2: 1, 4: 3, 8: 7, 16: 15}[P])
    if p.kind == "valu":
        if c.kind == "mfma" and vec(pd) & cu: n = max(n, 2)
        if c.kind == "mfma" and ("x", "exec") in pd: n = max(n, 4)
        if p.op.startswith(TRANS) and c.kind in ("valu", "mfma") and (pd & cu) and not c.op.startswith(TRANS): n = max(n, 1)
        if p.op.startswith(TRANS) and c.kind == "valu" and (pd & cu): n = max(n, 1)
        if c.kind == "valu":
            if sg(pd) & cu:
                n = max(n, 4 if c.op.startswith(("v_readlane", "v_writelane")) and False else 2)
            if c.op.startswith(("v_readfirstlane", "v_readlane")) and vec(pd) & cu: n = max(n, 1)
            if c.op.startswith("v_permlane") and vec(pd) & cu: n = max(n, 2)
            if "dpp" in c.text and vec(pd) & cu: n = max(n, 2)
            if ("x", "exec") in pd and c.op.startswith(("v_readfirstlane", "v_readlane", "v_permlane")): n = max(n, 4)
        if c.kind in ("vmem", "vmem_lds") and sg(pd) & cu: n = max(n, 5)
        if c.kind == "salu" and sg(pd) & cu: n = max(n, 1)
    if p.kind == "salu":
        if ("x", "m0") in pd and c.kind == "vmem_lds": n = max(n, 1)
    if p.wide_store_data:
        if c.kind == "valu" and set(p.wide_store_data) & cd: n = max(n, 2)
        elif set(p.wide_store_data) & cd: n = max(n, 1)
    return n

def c_ab(c):
    t = c.text.split(";")[0].strip().split(None, 1)[1]
    ops = [o.strip() for o in re.split(r',(?![^\[]*\])', t)]
    return regs_of(ops[1].split()[0]) + regs_of(ops[2].split()[0])

class Emit:
    def __init__(self):
        self.out = []
        self.hist = []
        self.nlabel = 0
        self.vm = []
        self.nops_inserted = 0
    def raw(self, s): self.out.append(s)
    def comment(self, s): self.out.append("    ; " + s)
    def label(self, name):
        self.out.append(name + ":")
    def newlabel(self, base="L"):
        self.nlabel += 1
        return f"{base}_{self.nlabel}"
    def __call__(self, s):
        for l in s.split("\n"):
            l = l.strip()
            if not l or l.startswith(";"): continue
            if l.endswith(":"):
                self.label(l[:-1]); continue
            self.ins(l)
    def ins(self, text):
        c = Ins(text)
        dist = 0; req = 0
        for p in reversed(self.hist[-24:]):
            n = need(p, c)
            if n > dist: req = max(req, n - dist)
            dist += p.states
            if dist >= 20: break
        while req > 0:
            k = min(req, 16)
            nop = Ins(f"s_nop {k-1}")
            self.hist.append(nop); self.out.append(f"    s_nop {k-1}"); self.nops_inserted += 1
            req -= k
        self.hist.append(c)
        self.out.append("    " + text)
        if c.kind in ("vmem", "vmem_lds") and not c.op.startswith(("buffer_wbl2", "buffer_inv")):
            self.vm.append(self.curtag)
    curtag = "?"
    def tag(self, t): self.curtag = t
    def vmwait(self, tag, extra=""):
        idx = [i for i, t in enumerate(self.vm) if t == tag]
        assert idx, f"no op with tag {tag} outstanding: {self.vm}"
        n = len(self.vm) - 1 - idx[-1]
        assert n <= 63, n
        self.ins(f"s_waitcnt vmcnt({n})" + (" " + extra if extra else ""))
        self.vm = self.vm[idx[-1] + 1:]
        return n
    def vmcount(self): return len(self.vm)
    def hazard_flush(self, n=12):
        self.ins(f"s_nop {n-1}")
    def text(self): return "\n".join(self.out) + "\n"
```

```python
import sys, math, struct
from emit import Emit
from asmlib import kernel_wrap, file_wrap

def f2u(f): return struct.unpack("<I", struct.pack("<f", f))[0]

KBASE = 0; VBASE = 65536; PBASE = 131072; TX = 131072; TW = 143360; MBASE = 159744; FLAG = MBASE + 3072
LDS_BYTES = 163840
O_OFF = 0
O_BYTES = 2 * 768 * 8192
PART_OFF = 16 << 20
PART_BYTES = 2 * 8 * 8 * 96 * 2048
STAMP_OFF = 0x10000000
TLOG = 8.0
CSC = math.log2(math.e) / math.sqrt(128.0)

vKd = 2; vVd = 6; vKr = 8; vVr = 16; vPw = 17; vPr = 18; vXg = 19; vWg = 20; vXw = 21; vWw = 24
vXr = 25; vWr = 29; vOst = 30; vLw = 31; vLr = 32; vMC = 33; vTHR = 36; vL = 39; vMR = 42; vMX = 45; vLT = 48
vT = 51
vS = 64; vO = 112; vPo = 160; vE = 184
vFl = 7
aQ = 0; aK = 96; aV = 128; aP = 160

class Cfg:
    wpol = ""
    kvpol = "nt"
    stamps = False

def common_setup(e):
    e("""
    s_load_dwordx16 s[40:55], s[0:1], 0
    s_load_dwordx4 s[56:59], s[0:1], 64
    s_load_dwordx4 s[60:63], s[0:1], 80
    s_load_dwordx2 s[64:65], s[0:1], 96
    v_lshrrev_b32 v51, 6, v0
    v_and_b32 v1, 63, v0
    v_readfirstlane_b32 s3, v51
    s_and_b32 s31, s2, 7
    s_lshr_b32 s32, s2, 3
    s_and_b32 s38, s32, 7
    s_lshr_b32 s33, s32, 3
    s_lshl_b32 s39, s31, 2
    s_add_u32 s39, s39, s33
    """)

def stamp(e, cfg, i):
    if cfg.stamps:
        e(f"s_memrealtime s[{80+2*i}:{81+2*i}]")

def stamp_store(e, cfg, n):
    if not cfg.stamps: return
    L = e.newlabel("Lst")
    e(f"""
    s_waitcnt lgkmcnt(0)
    s_cmp_lg_u32 s3, 0
    s_cbranch_scc1 {L}
    s_lshl_b32 s31, s2, 6
    s_add_u32 s64, s64, {STAMP_OFF}
    s_addc_u32 s65, s65, 0
    s_add_u32 s64, s64, s31
    s_addc_u32 s65, s65, 0
    v_mov_b32 v8, 0
    """)
    e("v_cmp_eq_u32 vcc, 0, v0\ns_and_saveexec_b64 s[70:71], vcc")
    for i in range(n):
        e(f"v_mov_b32 v4, s{80+2*i}\nv_mov_b32 v5, s{81+2*i}\nglobal_store_dwordx2 v8, v[4:5], s[64:65] offset:{8*i}\ns_nop 1")
    e("s_mov_b64 exec, s[70:71]")
    e.label(L)

def gemm_addr_setup(e, pitchX, pitchW):
    e(f"""
    s_mul_i32 s31, s3, 24
    v_lshrrev_b32 v51, 3, v1
    v_add_u32 v51, s31, v51              ; row = 24w + l>>3
    v_and_b32 v52, 7, v1                 ; piece
    s_mov_b32 s32, {pitchX}
    v_mul_lo_u32 v53, v51, s32
    v_lshl_add_u32 v{vXg}, v52, 4, v53
    """)
    for i in range(3):
        e(f"""
        v_add_u32 v53, {8*i}, v51
        v_lshrrev_b32 v54, 1, v53
        v_and_b32 v54, 7, v54
        v_xor_b32 v54, v54, v52
        v_lshlrev_b32 v54, 4, v54
        v_lshl_add_u32 v54, v53, 7, v54
        v_add_u32 v{vXw+i}, {TX}, v54
        """)
    e(f"""
    s_lshl_b32 s31, s3, 4
    v_lshrrev_b32 v51, 4, v1             ; l>>4
    v_add_u32 v52, s31, v51              ; row = 16w + l>>4
    v_and_b32 v53, 15, v1
    s_mov_b32 s32, {pitchW}
    v_mul_lo_u32 v54, v52, s32
    v_lshl_add_u32 v{vWg}, v53, 4, v54
    v_lshlrev_b32 v54, 2, v51
    v_xor_b32 v54, v54, v53
    v_lshlrev_b32 v54, 4, v54
    v_lshl_add_u32 v54, v52, 8, v54
    v_add_u32 v{vWw}, {TW}, v54
    """)
    e(f"""
    v_and_b32 v51, 31, v1
    v_lshrrev_b32 v52, 5, v1
    v_lshrrev_b32 v53, 1, v51
    v_and_b32 v53, 7, v53
    """)
    for s in range(4):
        e(f"""
        v_add_u32 v54, {2*s}, v52
        v_xor_b32 v54, v54, v53
        v_lshlrev_b32 v54, 4, v54
        v_lshl_add_u32 v54, v51, 7, v54
        v_add_u32 v{vXr+s}, {TX}, v54
        """)

def tr_addr_setup(e):
    e(f"""
    v_lshrrev_b32 v51, 5, v1             ; h
    v_bfe_u32 v52, v1, 2, 2              ; r4
    v_lshl_add_u32 v53, v51, 3, v52      ; 8h + r4
    v_lshlrev_b32 v53, 8, v53
    v_xor_b32 v54, s3, v52               ; w ^ r4
    v_lshlrev_b32 v54, 2, v54
    v_bfe_u32 v55, v1, 4, 1              ; g0
    v_lshl_add_u32 v54, v55, 1, v54
    v_and_b32 v55, 1, v1
    v_add_u32 v54, v54, v55
    v_lshl_add_u32 v53, v54, 4, v53
    v_bfe_u32 v55, v1, 1, 1
    v_lshl_add_u32 v53, v55, 3, v53
    v_add_u32 v{vVr}, {VBASE}, v53
    v_add_u32 v{vWr}, {TW}, v53
    s_mul_i32 s31, s3, 6144
    v_lshlrev_b32 v53, 4, v1
    v_add_u32 v{vPr}, {PBASE}, v53
    v_add_u32 v{vPw}, s31, v{vPr}
    """)

def gemm_loads(e, cfg, c, pol):
    e.tag(f"G{c}")
    base = 28 * c
    for i in range(3):
        e(f"buffer_load_dwordx4 a[{base+4*i}:{base+4*i+3}], v{vXg}, s[4:7], s{66+i} offen offset:{c*128} {pol}")
    for i in range(4):
        e(f"buffer_load_dwordx4 a[{base+12+4*i}:{base+12+4*i+3}], v{vWg}, s[8:11], s69 offen {pol}")
        if i < 3: e(f"s_add_u32 s69, s69, s33")
    e(f"s_add_u32 s69, s69, s34x".replace("s34x", "s75"))

def gemm_compute(e, cfg, acc, hook=None, fA=64, fB=160):
    for c in range(8):
        e.vmwait(f"G{c}")
        base = 28 * c
        for i in range(3):
            e(f"ds_write_b128 v{vXw+i}, a[{base+4*i}:{base+4*i+3}]")
        for i in range(4):
            e(f"ds_write_b128 v{vWw}, a[{base+12+4*i}:{base+12+4*i+3}] offset:{i*1024}")
        if hook: hook(c)
        e("s_waitcnt lgkmcnt(0)\ns_barrier")
        def reads(s):
            for u in range(2):
                e(f"ds_read_b64_tr_b16 v[{fA+4*s+2*u}:{fA+4*s+2*u+1}], v{vWr} offset:{s*4096+u*1024}")
            for t in range(3):
                e(f"ds_read_b128 v[{fB+(s*3+t)*4}:{fB+(s*3+t)*4+3}], v{vXr+s} offset:{t*4096}")
        reads(0); reads(1); reads(2)
        for s in range(4):
            if s == 0:
                e("s_waitcnt lgkmcnt(10)")
                reads(3)
            elif s == 1: e("s_waitcnt lgkmcnt(10)")
            elif s == 2: e("s_waitcnt lgkmcnt(5)")
            else:
                e("s_waitcnt lgkmcnt(0)\ns_barrier")
            for t in range(3):
                C = "0" if (c == 0 and s == 0) else f"v[{acc+16*t}:{acc+16*t+15}]"
                e(f"v_mfma_f32_32x32x16_bf16 v[{acc+16*t}:{acc+16*t+15}], v[{fA+4*s}:{fA+4*s+3}], v[{fB+(s*3+t)*4}:{fB+(s*3+t)*4+3}], {C}")

def issue_tile(e, cfg, which, sl, tag):
    e.tag(tag)
    if which == "K":
        srd, off, m0b, n, bptr = 12, 24, 34, 26, 52
    else:
        srd, off, m0b, n, bptr = 16, 25, 35, 27, 54
    for g in range(2):
        e(f"s_add_u32 m0, s{m0b}, {sl*32768 + g*4096}")
        if g == 0: e(f"s_add_u32 s32, s{off}, 4096")
        else: e("s_nop 0")
        for i in range(4):
            vo = (vKd + i) if which == "K" else vVd
            so = off if g == 0 else 32
            e(f"buffer_load_dwordx4 v{vo}, s[{srd}:{srd+3}], s{so} offen offset:{i*1024} {cfg.kvpol} lds")
    e(f"""
    s_add_u32 s{off}, s{off}, 32768
    s_add_u32 s{n}, s{n}, 1
    s_cmp_eq_u32 s{n}, 8
    s_cselect_b32 s{srd}, s{bptr}, s{srd}
    s_cselect_b32 s{srd+1}, s{bptr+1}, s{srd+1}
    s_cselect_b32 s{off}, s28, s{off}
    s_cmp_eq_u32 s{n}, 16
    s_cselect_b32 s{srd+2}, 0, s{srd+2}
    """)

def softmax_list(t, with_max=True):
    L = []
    S = vS + 16 * t
    if with_max:
        L.append(f"v_max3_f32 v{vMX+t}, v{S}, v{S+1}, v{S+2}")
        for k in range(6):
            L.append(f"v_max3_f32 v{vMX+t}, v{vMX+t}, v{S+3+2*k}, v{S+4+2*k}")
        L.append(f"v_max_f32 v{vMX+t}, v{vMX+t}, v{S+15}")
        L.append(f"v_cmp_gt_f32 vcc, v{vMX+t}, v{vTHR+t}")
        L.append(f"s_or_b64 s[72:73], s[72:73], vcc" if t else "s_mov_b64 s[72:73], vcc")
    for r2 in range(8):
        a = vE + (4 * r2) % 16 // 2 * 1
    for r2 in range(8):
        ta = vE + (2 * r2) % 16; tb = ta + 1
        r = 2 * r2
        L.append(f"v_fma_f32 v{ta}, v{S+r}, s36, -v{vMC+t}")
        L.append(f"v_fma_f32 v{tb}, v{S+r+1}, s36, -v{vMC+t}")
        L.append(f"v_exp_f32 v{ta}, v{ta}")
        L.append(f"v_exp_f32 v{tb}, v{tb}")
        if r2 == 0:
            L.append(f"v_add_f32 v{vLT+t}, v{ta}, v{tb}")
        else:
            L.append(f"v_add_f32 v{vLT+t}, v{vLT+t}, v{ta}")
            L.append(f"v_add_f32 v{vLT+t}, v{vLT+t}, v{tb}")
        L.append(f"v_cvt_pk_bf16_f32 v{vPo + t*8 + r2}, v{ta}, v{tb}")
    return L

def reorder_sm(L):
    return L

def p_writes(e):
    for t in range(3):
        for jj in range(2):
            b = vPo + t * 8 + jj * 4
            e(f"ds_write_b128 v{vPw}, v[{b}:{b+3}] offset:{(jj*3+t)*1024}")

def merge(e, A, B, ratio):
    bi = 0
    for a in A:
        e(a)
        for _ in range(ratio):
            if bi < len(B): e(B[bi]); bi += 1
    while bi < len(B):
        e(B[bi]); bi += 1

def body(e, cfg, sl):
    Lpost = e.newlabel("Lpost"); Lslow = e.newlabel("Lslow"); Lnf = e.newlabel("Lnf")
    e(f"s_waitcnt vmcnt(24)")
    for s in range(8):
        e(f"ds_read_b128 a[{aK+4*s}:{aK+4*s+3}], v{vKr+s} offset:{sl*32768}")
    def qk(t): return [f"v_mfma_f32_32x32x16_bf16 v[{vS+16*t}:{vS+16*t+15}], a[{aK+4*s}:{aK+4*s+3}], a[{aQ+(t*8+s)*4}:{aQ+(t*8+s)*4+3}], " + ("0" if s == 0 else f"v[{vS+16*t}:{vS+16*t+15}]") for s in range(8)]
    q0 = qk(0)
    for s in range(8):
        e(f"s_waitcnt lgkmcnt({7-s})")
        e(q0[s])
    issue_tile(e, cfg, "K", sl, "K")
    merge(e, qk(1), softmax_list(0), 8)
    merge(e, qk(2), softmax_list(1), 8)
    merge(e, [], softmax_list(2), 0)
    e(f"""
    s_cmp_eq_u64 s[72:73], 0
    s_cbranch_scc1 {Lnf}
    v_mov_b32 v{vT}, 1
    ds_write_b32 v{vFl}, v{vT}
    """)
    e.label(Lnf)
    p_writes(e)
    e("s_waitcnt vmcnt(24) lgkmcnt(0)\ns_barrier")
    e.label(Lpost)
    e(f"ds_read_b32 v{vT}, v{vFl}")
    def reads(j):
        for u in range(2):
            e(f"ds_read_b64_tr_b16 a[{aV+4*j+2*u}:{aV+4*j+2*u+1}], v{vVr} offset:{sl*32768+j*4096+u*1024}")
        for t in range(3):
            e(f"ds_read_b128 a[{aP+(j*3+t)*4}:{aP+(j*3+t)*4+3}], v{vPr} offset:{(j*3+t)*1024}")
    reads(0); reads(1)
    e(f"""
    s_waitcnt lgkmcnt(10)
    v_readfirstlane_b32 s31, v{vT}
    s_cmp_lg_u32 s31, 0
    s_cbranch_scc1 {Lslow}
    """)
    for t in range(3):
        e(f"v_add_f32 v{vL+t}, v{vL+t}, v{vLT+t}")
    reads(2)
    for j in range(8):
        if j <= 4:
            e("s_waitcnt lgkmcnt(10)")
        elif j == 5: e("s_waitcnt lgkmcnt(10)")
        elif j == 6: e("s_waitcnt lgkmcnt(5)")
        else: e("s_waitcnt lgkmcnt(0)\ns_barrier")
        for t in range(3):
            e(f"v_mfma_f32_32x32x16_bf16 v[{vO+16*t}:{vO+16*t+15}], a[{aV+4*j}:{aV+4*j+3}], a[{aP+(j*3+t)*4}:{aP+(j*3+t)*4+3}], v[{vO+16*t}:{vO+16*t+15}]")
        if j + 3 < 8: reads(j + 3)
    issue_tile(e, cfg, "V", sl, "V")
    return Lslow, Lpost

def slow_path(e, Lslow, Lpost):
    e.label(Lslow)
    e.hist = []
    e("s_nop 7\ns_nop 7")
    for t in range(3):
        e(f"ds_write_b32 v{vLw}, v{vMX+t} offset:{t*1024}")
    e("s_waitcnt lgkmcnt(0)\ns_barrier")
    e(f"v_mov_b32 v{vT}, 0\nds_write_b32 v{vFl}, v{vT}")
    for t in range(3):
        e(f"ds_read_b128 v[{vE}:{vE+3}], v{vLr} offset:{t*1024}")
        e(f"ds_read_b128 v[{vE+4}:{vE+7}], v{vLr} offset:{t*1024+16}")
        e("s_waitcnt lgkmcnt(0)")
        e(f"""
        v_max3_f32 v{vT+1}, v{vE}, v{vE+1}, v{vE+2}
        v_max3_f32 v{vT+1}, v{vT+1}, v{vE+3}, v{vE+4}
        v_max3_f32 v{vT+1}, v{vT+1}, v{vE+5}, v{vE+6}
        v_max3_f32 v{vT+1}, v{vT+1}, v{vE+7}, v{vMR+t}
        v_sub_f32 v{vT+2}, v{vMR+t}, v{vT+1}
        v_mul_f32 v{vT+2}, s36, v{vT+2}
        v_exp_f32 v{vT+2}, v{vT+2}
        v_mov_b32 v{vMR+t}, v{vT+1}
        v_mul_f32 v{vMC+t}, s36, v{vT+1}
        v_add_f32 v{vTHR+t}, s37, v{vT+1}
        v_mul_f32 v{vL+t}, v{vL+t}, v{vT+2}
        """)
        for r in range(16):
            e(f"v_mul_f32 v{vO+16*t+r}, v{vO+16*t+r}, v{vT+2}")
    for t in range(3):
        for i in softmax_list(t, with_max=False): e(i)
    p_writes(e)
    e("s_waitcnt lgkmcnt(0)\ns_barrier")
    e(f"s_branch {Lpost}")

def k1(cfg):
    e = Emit()
    e("s_cmp_ge_u32 s2, 256\ns_cbranch_scc1 L_end1")
    stamp(e, cfg, 0)
    common_setup(e)
    e(f"""
    v_lshrrev_b32 v51, 4, v1
    v_and_b32 v52, 15, v1
    """)
    for i in range(4):
        e(f"""
        v_add_u32 v53, {4*i}, v51
        v_xor_b32 v53, v53, v52
        v_lshlrev_b32 v53, 4, v53
        v_lshl_add_u32 v{vKd+i}, v51, 8, v53
        """)
    e(f"""
    v_lshlrev_b32 v53, 2, v51
    v_xor_b32 v53, v53, v52
    v_lshlrev_b32 v53, 4, v53
    v_lshl_add_u32 v{vVd}, v51, 8, v53
    """)
    e(f"""
    v_and_b32 v51, 31, v1
    v_and_b32 v52, 0x13, v51
    v_and_b32 v53, 4, v51
    v_lshl_or_b32 v52, v53, 1, v52
    v_and_b32 v53, 8, v51
    v_lshrrev_b32 v53, 1, v53
    v_or_b32 v52, v52, v53               ; row
    v_and_b32 v53, 15, v52
    v_lshrrev_b32 v54, 5, v1             ; h
    s_lshl_b32 s31, s3, 13
    v_lshlrev_b32 v55, 8, v52
    v_add_u32 v55, s31, v55
    """)
    for s in range(8):
        e(f"""
        v_add_u32 v56, {2*s}, v54
        v_xor_b32 v56, v56, v53
        v_lshl_add_u32 v{vKr+s}, v56, 4, v55
        """)
    tr_addr_setup(e)
    gemm_addr_setup(e, 1024, 8192)
    e(f"""
    v_and_b32 v51, 31, v1
    v_lshrrev_b32 v52, 5, v1
    v_lshlrev_b32 v53, 13, v51
    v_lshl_add_u32 v53, v52, 4, v53
    s_lshl_b32 s31, s3, 6
    v_add_u32 v{vOst}, s31, v53
    v_lshlrev_b32 v53, 5, v51
    v_add_u32 v{vLr}, {MBASE}, v53
    s_lshl_b32 s31, s3, 3
    v_lshl_add_u32 v53, v52, 2, v{vLr}
    v_add_u32 v{vLw}, s31, v53
    v_mov_b32 v{vFl}, {FLAG}
    v_mov_b32 v{vT}, 0
    ds_write_b32 v{vFl}, v{vT}
    s_mov_b32 s36, {f2u(CSC):#x}
    s_mov_b32 s37, {f2u(TLOG/CSC):#x}
    s_lshl_b32 s34, s3, 13
    s_add_u32 s35, s34, {VBASE}
    s_waitcnt lgkmcnt(0)
    """)
    e(f"""
    s_mov_b32 s12, s42
    s_mov_b32 s13, s43
    s_mov_b32 s14, 0x4000000
    s_mov_b32 s15, 0x20000
    s_mov_b32 s16, s44
    s_mov_b32 s17, s45
    s_mov_b32 s18, 0x4000000
    s_mov_b32 s19, 0x20000
    s_mov_b32 s20, s64
    s_mov_b32 s21, s65
    s_mov_b32 s22, {O_BYTES}
    s_mov_b32 s23, 0x20000
    s_mov_b32 s6, 786432
    s_mov_b32 s7, 0x20000
    s_mov_b32 s10, 0x400000
    s_mov_b32 s11, 0x20000
    s_lshl_b32 s28, s38, 5
    s_add_u32 s28, s28, s39
    s_lshl_b32 s28, s28, 18
    s_add_u32 s28, s28, s34
    s_mov_b32 s24, s28
    s_mov_b32 s25, s28
    s_mov_b32 s26, 0
    s_mov_b32 s27, 0
    s_mov_b32 s30, 0
    s_mov_b32 s33, {4*8192}
    s_mov_b32 s75, {52*8192}
    """)
    def q_setup(u):
        xp = 40 + 10 * u; wp = 46 + 10 * u
        e(f"""
        s_mov_b32 s4, s{xp}
        s_mov_b32 s5, s{xp+1}
        s_mov_b32 s8, s{wp}
        s_mov_b32 s9, s{wp+1}
        s_mul_i32 s66, s38, 98304
        s_add_u32 s67, s66, 8192
        s_add_u32 s68, s66, 16384
        s_lshl_b32 s69, s39, 8
        """)
    for u in range(2):
        q_setup(u)
        if u == 0:
            for c in range(4): gemm_loads(e, cfg, c, cfg.wpol)
            issue_tile(e, cfg, "K", 0, "K"); issue_tile(e, cfg, "V", 0, "V")
            gemm_loads(e, cfg, 4, cfg.wpol); gemm_loads(e, cfg, 5, cfg.wpol)
            def hook(c):
                if c == 0: gemm_loads(e, cfg, 6, cfg.wpol)
                if c == 1: gemm_loads(e, cfg, 7, cfg.wpol)
                if c == 2: issue_tile(e, cfg, "K", 1, "K")
                if c == 3: issue_tile(e, cfg, "V", 1, "V")
        else:
            for c in range(3): gemm_loads(e, cfg, c, cfg.wpol)
            def hook(c):
                if c + 3 < 8: gemm_loads(e, cfg, c + 3, cfg.wpol)
        gemm_compute(e, cfg, vO, hook)
        stamp(e, cfg, 1 + 3 * u)
        for t in range(3):
            for r2 in range(8):
                e(f"v_cvt_pk_bf16_f32 v{vPo+t*8+r2}, v{vO+16*t+2*r2}, v{vO+16*t+2*r2+1}")
        p_writes(e)
        e("s_waitcnt lgkmcnt(0)\ns_barrier")
        for t in range(3):
            for s in range(8):
                e(f"ds_read_b128 a[{aQ+(t*8+s)*4}:{aQ+(t*8+s)*4+3}], v{vPr} offset:{(s*3+t)*1024}")
        for t in range(3):
            e(f"""
            v_mov_b32 v{vMR+t}, {f2u(-1e30):#x}
            v_mov_b32 v{vTHR+t}, {f2u(-1e30):#x}
            v_mov_b32 v{vMC+t}, 0
            v_mov_b32 v{vL+t}, 0
            """)
            for r in range(16): e(f"v_mov_b32 v{vO+16*t+r}, 0")
        e("s_waitcnt lgkmcnt(0)\ns_barrier")
        e("s_mov_b32 s29, 4")
        Lloop = e.newlabel("Lloop")
        e.label(Lloop)
        e.vm = ["K"] * 8 + ["V"] * 8 + ["K"] * 8 + ["V"] * 8
        sp = []
        sp.append(body(e, cfg, 0))
        sp.append(body(e, cfg, 1))
        Lskip = e.newlabel("Lskip")
        e(f"""
        s_sub_u32 s29, s29, 1
        s_cmp_lg_u32 s29, 0
        s_cbranch_scc1 {Lloop}
        s_branch {Lskip}
        """)
        hist = e.hist
        for a, b in sp: slow_path(e, a, b)
        e.label(Lskip)
        e.hist = hist
        e.vm = ["K"] * 8 + ["V"] * 8 + ["K"] * 8 + ["V"] * 8
        stamp(e, cfg, 2 + 3 * u)
        for t in range(3):
            e(f"ds_write_b32 v{vLw}, v{vL+t} offset:{t*1024}")
        e("s_waitcnt lgkmcnt(0)\ns_barrier")
        e(f"""
        s_lshl_b32 s31, s38, 0
        s_add_u32 s31, s31, {8*u}
        s_mul_i32 s31, s31, {96*8192}
        s_lshl_b32 s32, s39, 8
        s_add_u32 s31, s31, s32
        """)
        e.tag("O")
        for t in range(3):
            e(f"ds_read_b128 v[{vE}:{vE+3}], v{vLr} offset:{t*1024}")
            e(f"ds_read_b128 v[{vE+4}:{vE+7}], v{vLr} offset:{t*1024+16}")
            e("s_waitcnt lgkmcnt(0)")
            e(f"""
            v_add_f32 v{vE}, v{vE}, v{vE+1}
            v_add_f32 v{vE+2}, v{vE+2}, v{vE+3}
            v_add_f32 v{vE+4}, v{vE+4}, v{vE+5}
            v_add_f32 v{vE+6}, v{vE+6}, v{vE+7}
            v_add_f32 v{vE}, v{vE}, v{vE+2}
            v_add_f32 v{vE+4}, v{vE+4}, v{vE+6}
            v_add_f32 v{vE}, v{vE}, v{vE+4}
            v_rcp_f32 v{vE}, v{vE}
            """)
            for r2 in range(8):
                e(f"v_mul_f32 v{vO+16*t+2*r2}, v{vO+16*t+2*r2}, v{vE}")
                e(f"v_mul_f32 v{vO+16*t+2*r2+1}, v{vO+16*t+2*r2+1}, v{vE}")
                e(f"v_cvt_pk_bf16_f32 v{vPo+t*8+r2}, v{vO+16*t+2*r2}, v{vO+16*t+2*r2+1}")
            for jj in range(2):
                b = vPo + t * 8 + jj * 4
                e(f"buffer_store_dwordx4 v[{b}:{b+3}], v{vOst}, s[20:23], s31 offen offset:{jj*32}")
            if t < 2: e(f"s_add_u32 s31, s31, {32*8192}")
        stamp(e, cfg, 3 + 3 * u)
    stamp_store(e, cfg, 7)
    e.label("L_end1")
    e("s_endpgm")
    return e.text()

def k2(cfg):
    e = Emit()
    e("s_cmp_ge_u32 s2, 256\ns_cbranch_scc1 L_end2")
    common_setup(e)
    e("s_mov_b32 s29, s31")
    e("s_mov_b32 s30, s33")
    tr_addr_setup(e)
    gemm_addr_setup(e, 8192, 1024)
    e(f"""
    v_and_b32 v51, 31, v1
    v_lshrrev_b32 v52, 5, v1
    v_lshlrev_b32 v53, 11, v51
    v_lshl_add_u32 v53, v52, 5, v53
    s_lshl_b32 s31, s3, 7
    v_add_u32 v{vOst}, s31, v53          ; c*2048 + w*128 + h*32
    s_waitcnt lgkmcnt(0)
    s_mov_b32 s4, s64
    s_mov_b32 s5, s65
    s_mov_b32 s6, {O_BYTES}
    s_mov_b32 s7, 0x20000
    s_mov_b32 s10, 0x400000
    s_mov_b32 s11, 0x20000
    s_add_u32 s20, s64, {PART_OFF}
    s_addc_u32 s21, s65, 0
    s_mov_b32 s22, {PART_BYTES}
    s_mov_b32 s23, 0x20000
    s_mov_b32 s33, {4*1024}
    s_mov_b32 s75, {52*1024}
    """)
    for p in range(2):
        wp = 48 + 10 * p
        e(f"""
        s_mov_b32 s8, s{wp}
        s_mov_b32 s9, s{wp+1}
        s_add_u32 s66, s38, {8*p}
        s_mul_i32 s66, s66, {96*8192}
        s_lshl_b32 s31, s29, 10
        s_add_u32 s66, s66, s31
        s_add_u32 s67, s66, {8*8192}
        s_add_u32 s68, s66, {16*8192}
        s_lshl_b32 s69, s29, 19
        s_lshl_b32 s31, s30, 8
        s_add_u32 s69, s69, s31
        """)
        for c in range(8): gemm_loads(e, cfg, c, cfg.wpol)
        gemm_compute(e, cfg, vO)
        e(f"""
        s_add_u32 s31, s38, {8*p}
        s_lshl_b32 s31, s31, 3
        s_add_u32 s31, s31, s29
        s_mul_i32 s31, s31, {96*2048}
        s_lshl_b32 s32, s30, 9
        s_add_u32 s31, s31, s32
        """)
        e.tag("P")
        for t in range(3):
            for jj in range(2):
                for q in range(2):
                    b = vO + 16 * t + 8 * jj + 4 * q
                    e(f"buffer_store_dwordx4 v[{b}:{b+3}], v{vOst}, s[20:23], s31 offen offset:{jj*64+q*16}")
            if t < 2: e(f"s_add_u32 s31, s31, {32*2048}")
        e.vmwait("P")
    e.label("L_end2")
    e("s_endpgm")
    return e.text()

def k3(cfg):
    e = Emit()
    e("s_cmp_ge_u32 s2, 256\ns_cbranch_scc1 L_end3")
    common_setup(e)
    e(f"""
    s_mov_b32 s29, s31
    s_mov_b32 s30, s33
    v_lshrrev_b32 v2, 4, v0             ; row 0..15
    v_and_b32 v3, 15, v0                ; col8
    s_mul_i32 s31, s29, 12
    v_add_u32 v4, s31, v2               ; q
    v_lshlrev_b32 v5, 11, v4
    v_lshl_add_u32 v5, v3, 5, v5        ; q*2048 + col8*32
    s_lshl_b32 s31, s30, 9
    v_add_u32 v5, s31, v5               ; + hh*512
    v_lshlrev_b32 v6, 11, v4
    v_lshl_add_u32 v6, v3, 4, v6
    s_lshl_b32 s31, s30, 8
    v_add_u32 v6, s31, v6
    s_waitcnt lgkmcnt(0)
    s_add_u32 s20, s64, {PART_OFF}
    s_addc_u32 s21, s65, 0
    s_mov_b32 s22, {PART_BYTES}
    s_mov_b32 s23, 0x20000
    s_mov_b32 s4, s60
    s_mov_b32 s5, s61
    s_mov_b32 s6, {768*2048}
    s_mov_b32 s7, 0x20000
    v_cmp_gt_u32 vcc, 192, v0
    s_and_saveexec_b64 s[70:71], vcc
    s_cbranch_execz L_end3
    """)
    for p in range(2):
        e(f"""
        s_add_u32 s31, s38, {8*p}
        s_mul_i32 s31, s31, {8*96*2048}
        """)
        e.tag("R")
        for s in range(8):
            for q in range(2):
                b = 16 + p * 64 + s * 8 + q * 4
                e(f"buffer_load_dwordx4 v[{b}:{b+3}], v5, s[20:23], s31 offen offset:{q*16}")
            if s < 7: e(f"s_add_u32 s31, s31, {96*2048}")
    e("s_waitcnt vmcnt(16)")
    for p in range(2):
        if p == 1: e("s_waitcnt vmcnt(1)")
        base = 16 + p * 64
        for s in range(1, 8):
            for k in range(8):
                e(f"v_add_f32 v{base+k}, v{base+k}, v{base+s*8+k}")
        for k in range(4):
            e(f"v_cvt_pk_bf16_f32 v{8+4*p+k}, v{base+2*k}, v{base+2*k+1}")
        e(f"""
        s_mul_i32 s31, s38, {96*2048}
        s_add_u32 s31, s31, {p*1024}
        buffer_store_dwordx4 v[{8+4*p}:{11+4*p}], v6, s[4:7], s31 offen
        """)
    e.label("L_end3")
    e("s_endpgm")
    return e.text()

def build(cfg):
    KN = "concat_heads__mha_block_cached__gqa_block_cached__near_ridge"
    ks = [kernel_wrap("attn_kernel", k1(cfg)), kernel_wrap("oproj_kernel", k2(cfg)), kernel_wrap("reduce_kernel", k3(cfg), vgpr=160, accum=160)]
    launches = [f"; @launch kernel=attn_kernel grid=(256,1,1) block=(256,1,1) lds={LDS_BYTES}",
                f"; @launch kernel=oproj_kernel grid=(256,1,1) block=(256,1,1) lds={LDS_BYTES}",
                f"; @launch kernel=reduce_kernel grid=(256,1,1) block=(256,1,1) lds=0"]
    return file_wrap(launches, ks)

if __name__ == "__main__":
    cfg = Cfg()
    cfg.stamps = "--stamps" in sys.argv
    out = [a for a in sys.argv[1:] if not a.startswith("--")][0]
    open(out, "w").write(build(cfg))
```
